```python
import torch

def _softmax(x, axis=-1):
    return torch.softmax(x, dim=axis)

def _gelu(x):
    return torch.nn.functional.gelu(x, approximate='tanh')

def _silu(x):
    return torch.nn.functional.silu(x)

def _sigmoid(x):
    return torch.sigmoid(x)

def _layernorm(x, axis=-1, eps=1e-05):
    m = x.mean(dim=axis, keepdim=True)
    v = x.var(dim=axis, keepdim=True, unbiased=False)
    return (x - m) / torch.sqrt(v + eps)

def _scatter_add(tgt, idx, src, axis=0):
    return tgt.clone().index_add_(axis, idx, src)

def _segment_sum(src, seg, n):
    out = torch.zeros((n,) + src.shape[1:], dtype=src.dtype)
    return out.index_add_(0, seg, src)

def _pad(x, pw):
    flat = tuple((v for pair in reversed(pw) for v in pair))
    return torch.nn.functional.pad(x, flat)
kernel_name = 'standalone__factorization_afm__recsys'

def setup_inputs():

    _w = lambda a: (lambda t: t.to(torch.bfloat16) if t.is_floating_point() else t)(torch.as_tensor(a))
    B, F, D, V = (1024, 100, 32, min(1000000, 100000))
    A = D
    ii, jj = tuple(torch.triu_indices(F, F, 1).unbind(0))
    return {'idx': _w((lambda lo, hi, *s: torch.randint(lo, hi, s))(0, V, B, F).to(torch.int64)), 'table': _w((lambda *s: torch.randn(*s, dtype=torch.bfloat16) * 0.8)(V, D)), 'ii': _w(ii.to(torch.int64)), 'jj': _w(jj.to(torch.int64)), 'W': _w((lambda *s: torch.randn(*s, dtype=torch.bfloat16) * 0.8)(D, A) * (1.0 / D ** 0.5)), 'b': _w((lambda *s: torch.randn(*s, dtype=torch.bfloat16) * 0.8)(A)), 'h': _w((lambda *s: torch.randn(*s, dtype=torch.bfloat16) * 0.8)(A)), 'p': _w((lambda *s: torch.randn(*s, dtype=torch.bfloat16) * 0.8)(D))}

def reference(idx, table, ii, jj, W, b, h, p):
    emb = table[idx]
    ei = emb[:, ii, :].clone()
    ej = emb[:, jj, :].clone()
    pair = ei * ej
    hid = pair @ W + b
    hid = 0.5 * (hid + torch.abs(hid))
    e = hid @ h
    alpha = _softmax(e, axis=-1)
    pooled = torch.einsum('bp,bpd->bd', alpha, pair)
    return pooled @ p
```

```python
KNAME = "standalone__factorization_afm__recsys_kernel"

HEADER_COMMENT = """; Kernarg layout for this problem (88 bytes, ptrs only, base s[0:1]):
"""

def wrap(body, grid, block, lds, nvgpr, nsgpr=102, accum=None, extra_desc=""):
    if accum is None:
        accum = (nvgpr + 3) // 4 * 4
    return (HEADER_COMMENT +
f"""; @launch grid=({grid},1,1) block=({block},1,1) lds={lds}
.amdgcn_target "amdgcn-amd-amdhsa--gfx950"
.text
.globl {KNAME}
.p2align 8
.type {KNAME},@function
{KNAME}:
{body}
.section .rodata,"a"
.p2align 6
.amdhsa_kernel {KNAME}
  .amdhsa_next_free_vgpr {nvgpr}
  .amdhsa_next_free_sgpr {nsgpr}
  .amdhsa_accum_offset {accum}
  .amdhsa_group_segment_fixed_size 0
  .amdhsa_kernarg_size 88
  .amdhsa_user_sgpr_count 2
  .amdhsa_user_sgpr_kernarg_segment_ptr 1
  .amdhsa_system_sgpr_workgroup_id_x 1
{extra_desc}.end_amdhsa_kernel
""")

class Asm:
    def __init__(self):
        self.lines = []
    def __call__(self, s):
        for l in s.strip("\n").split("\n"):
            self.lines.append("    " + l.strip() if not l.strip().endswith(":") else l.strip())
    def label(self, s):
        self.lines.append(s + ":")
    def text(self):
        return "\n".join(self.lines)
```

```python
import sys
from common import *

def srd(a, d, base, nbytes):
    a(f"s_mov_b32 s{d}, s{base}")
    a(f"s_mov_b32 s{d+1}, s{base+1}")
    a(f"s_mov_b32 s{d+2}, {nbytes}")
    a(f"s_mov_b32 s{d+3}, 0x00020000")

def generic_path(a, NW, batch_sgpr="s2", lds_base=0, pfx="G"):
    NT = 64 * NW
    a("s_load_dwordx16 s[4:19], s[0:1], 0")
    a("s_load_dwordx2 s[20:21], s[0:1], 64")
    a("s_waitcnt lgkmcnt(0)")
    srd(a, 24, 4, 1024*100*4)
    srd(a, 28, 6, 100000*64)
    srd(a, 32, 8, 4950*4)
    srd(a, 36, 10, 4950*4)
    srd(a, 40, 12, 2048)
    srd(a, 44, 14, 64)
    srd(a, 48, 16, 64)
    srd(a, 52, 18, 64)
    srd(a, 56, 20, 2048)
    rows_per_pass = NT // 4
    npass = (100 + rows_per_pass - 1) // rows_per_pass
    a(f"s_mul_i32 s3, {batch_sgpr}, 400")
    a("v_lshrrev_b32 v1, 2, v0")
    a("v_and_b32 v2, 3, v0")
    a("v_lshlrev_b32 v2, 4, v2")
    for k in range(npass):
        a(f"v_add_u32 v3, {k*rows_per_pass}, v1")
        a("v_min_u32 v3, 99, v3")
        a("v_lshlrev_b32 v4, 2, v3")
        a(f"buffer_load_dword v5, v4, s[24:27], s3 offen")
        a("s_waitcnt vmcnt(0)")
        a("v_lshl_add_u32 v5, v5, 6, v2")
        a("buffer_load_dwordx4 v[8:11], v5, s[28:31], 0 offen")
        a("v_lshl_add_u32 v6, v3, 6, v2")
        a("s_waitcnt vmcnt(0)")
        a(f"ds_write_b128 v6, v[8:11] offset:{lds_base}")
    a("v_and_b32 v1, 63, v0")
    a("v_and_b32 v2, 31, v0")
    a("v_lshrrev_b32 v3, 5, v1")
    a("v_lshlrev_b32 v4, 10, v3")
    a("v_lshl_add_u32 v4, v2, 1, v4")
    WA = 16
    for j in range(16):
        a(f"buffer_load_ushort v{64 + j}, v4, s[40:43], 0 offen offset:{j*64}")
    BI = 24
    HC = 40
    PC = 56
    a("v_lshlrev_b32 v5, 3, v3")
    for r in range(16):
        off = (8*(r//4) + r % 4) * 2
        a(f"buffer_load_ushort v{BI+r}, v5, s[44:47], 0 offen offset:{off}")
        a(f"buffer_load_ushort v{HC+r}, v5, s[48:51], 0 offen offset:{off}")
    a("v_lshlrev_b32 v6, 5, v3")
    a(f"buffer_load_dwordx4 v[{PC}:{PC+3}], v6, s[52:55], 0 offen")
    a(f"buffer_load_dwordx4 v[{PC+4}:{PC+7}], v6, s[52:55], 0 offen offset:16")
    a("s_waitcnt vmcnt(0)")
    for k in range(8):
        a(f"v_lshl_or_b32 v{WA+k}, v{65+2*k}, 16, v{64+2*k}")
    for r in range(16):
        a(f"v_lshlrev_b32 v{BI+r}, 16, v{BI+r}")
        a(f"v_lshlrev_b32 v{HC+r}, 16, v{HC+r}")
    a("s_waitcnt lgkmcnt(0)")
    a("s_barrier")
    a("v_mov_b32 v12, 0xff7fffff")
    a("v_mov_b32 v13, 0")
    a("v_mov_b32 v14, 0")
    a("v_lshrrev_b32 v7, 6, v0")
    a("v_lshl_add_u32 v7, v7, 5, v2")
    a("s_mov_b32 s60, 0x3fb8aa3b")
    a("s_mov_b32 s61, 0xffff0000")
    a(f"s_mov_b32 s62, {(155 + NW - 1)//NW}")
    a("s_movk_i32 s63, 4950")
    EI = 64; EJ = 72; PR = 80; D = 88; T0 = 104; T1 = 105; T2 = 106; T3 = 107
    a.label(f"{pfx}_loop")
    a("v_lshlrev_b32 v8, 2, v7")
    a("buffer_load_dword v9, v8, s[32:35], 0 offen")
    a("buffer_load_dword v10, v8, s[36:39], 0 offen")
    a("s_waitcnt vmcnt(0)")
    a("v_min_u32 v9, 99, v9")
    a("v_min_u32 v10, 99, v10")
    a("v_lshl_add_u32 v9, v9, 6, v6")
    a("v_lshl_add_u32 v10, v10, 6, v6")
    a(f"ds_read_b128 v[{EI}:{EI+3}], v9 offset:{lds_base}")
    a(f"ds_read_b128 v[{EI+4}:{EI+7}], v9 offset:{lds_base+16}")
    a(f"ds_read_b128 v[{EJ}:{EJ+3}], v10 offset:{lds_base}")
    a(f"ds_read_b128 v[{EJ+4}:{EJ+7}], v10 offset:{lds_base+16}")
    a("s_waitcnt lgkmcnt(0)")
    for k in range(8):
        a(f"v_lshlrev_b32 v{T0}, 16, v{EI+k}")
        a(f"v_lshlrev_b32 v{T1}, 16, v{EJ+k}")
        a(f"v_and_b32 v{T2}, s61, v{EI+k}")
        a(f"v_and_b32 v{T3}, s61, v{EJ+k}")
        a(f"v_mul_f32 v{T0}, v{T0}, v{T1}")
        a(f"v_mul_f32 v{T2}, v{T2}, v{T3}")
        a(f"v_cvt_pk_bf16_f32 v{PR+k}, v{T0}, v{T2}")
    a("s_nop 1")
    a(f"v_mfma_f32_32x32x16_bf16 v[{D}:{D+15}], v[{WA}:{WA+3}], v[{PR}:{PR+3}], v[{BI}:{BI+15}]")
    a(f"v_mfma_f32_32x32x16_bf16 v[{D}:{D+15}], v[{WA+4}:{WA+7}], v[{PR+4}:{PR+7}], v[{D}:{D+15}]")
    a("v_mov_b32 v11, 0")
    for k in range(8):
        a(f"v_lshlrev_b32 v{T0}, 16, v{PR+k}")
        a(f"v_lshlrev_b32 v{T1}, 16, v{PC+k}")
        a(f"v_and_b32 v{T2}, s61, v{PR+k}")
        a(f"v_and_b32 v{T3}, s61, v{PC+k}")
        a(f"v_fmac_f32 v11, v{T0}, v{T1}")
        a(f"v_fmac_f32 v11, v{T2}, v{T3}")
    a("v_mov_b32 v15, 0")
    for r in range(16):
        a(f"v_max_f32 v{D+r}, 0, v{D+r}")
        a(f"v_fmac_f32 v15, v{D+r}, v{HC+r}")
    a(f"v_mov_b32 v{T0}, v11")
    a(f"v_mov_b32 v{T1}, v15")
    a("s_nop 1")
    a(f"v_permlane32_swap_b32 v11, v{T0}")
    a(f"v_permlane32_swap_b32 v15, v{T1}")
    a("s_nop 1")
    a(f"v_add_f32 v11, v11, v{T0}")
    a(f"v_add_f32 v15, v15, v{T1}")
    a("v_cmp_gt_u32 vcc, s63, v7")
    a(f"v_mov_b32 v{T0}, 0xff800000")
    a("s_nop 1")
    a(f"v_cndmask_b32 v15, v{T0}, v15, vcc")
    a(f"v_max_f32 v{T0}, v12, v15")
    a(f"v_sub_f32 v{T1}, v12, v{T0}")
    a(f"v_sub_f32 v{T2}, v15, v{T0}")
    a(f"v_mul_f32 v{T1}, s60, v{T1}")
    a(f"v_mul_f32 v{T2}, s60, v{T2}")
    a(f"v_exp_f32 v{T1}, v{T1}")
    a(f"v_exp_f32 v{T2}, v{T2}")
    a(f"v_mov_b32 v12, v{T0}")
    a(f"v_fma_f32 v13, v13, v{T1}, v{T2}")
    a(f"v_mul_f32 v{T2}, v{T2}, v11")
    a(f"v_fma_f32 v14, v14, v{T1}, v{T2}")
    a(f"v_add_u32 v7, {32*NW}, v7")
    a("s_sub_u32 s62, s62, 1")
    a("s_cmp_lg_u32 s62, 0")
    a(f"s_cbranch_scc1 {pfx}_loop")
    RB = lds_base + 8192
    a("v_lshlrev_b32 v8, 4, v0")
    a(f"ds_write_b96 v8, v[12:14] offset:{RB}")
    a("s_waitcnt lgkmcnt(0)")
    a("s_barrier")
    a("v_lshlrev_b32 v8, 4, v1")
    for w in range(NW):
        a(f"ds_read_b96 v[{64+4*w}:{66+4*w}], v8 offset:{RB + w*1024}")
    a("s_waitcnt lgkmcnt(0)")
    a("v_mov_b32 v12, v64")
    for w in range(1, NW):
        a(f"v_max_f32 v12, v12, v{64+4*w}")
    a("v_lshlrev_b32 v9, 2, v1")
    for mask in (1, 2, 4, 8, 16, 32):
        a(f"v_xor_b32 v10, {mask*4}, v9")
        a("ds_bpermute_b32 v11, v10, v12")
        a("s_waitcnt lgkmcnt(0)")
        a("v_max_f32 v12, v12, v11")
    a("v_mov_b32 v13, 0")
    a("v_mov_b32 v14, 0")
    for w in range(NW):
        a(f"v_sub_f32 v10, v{64+4*w}, v12")
        a("v_mul_f32 v10, s60, v10")
        a("v_exp_f32 v10, v10")
        a("s_nop 0")
        a(f"v_fmac_f32 v13, v{65+4*w}, v10")
        a(f"v_fmac_f32 v14, v{66+4*w}, v10")
    for mask in (1, 2, 4, 8, 16, 32):
        a(f"v_xor_b32 v10, {mask*4}, v9")
        a("ds_bpermute_b32 v11, v10, v13")
        a("ds_bpermute_b32 v15, v10, v14")
        a("s_waitcnt lgkmcnt(0)")
        a("v_add_f32 v13, v13, v11")
        a("v_add_f32 v14, v14, v15")
    a("v_rcp_f32 v13, v13")
    a("s_nop 0")
    a("v_mul_f32 v14, v14, v13")
    a("v_cvt_pk_bf16_f32 v14, v14, v14")
    a(f"s_lshl_b32 s3, {batch_sgpr}, 1")
    a("v_mov_b32 v8, s3")
    a("v_cmp_eq_u32 vcc, 0, v0")
    a("s_and_saveexec_b64 s[22:23], vcc")
    a(f"s_cbranch_execz {pfx}_end")
    a("buffer_store_short v14, v8, s[56:59], 0 offen")
    a.label(f"{pfx}_end")
    a("s_endpgm")

if __name__ == "__main__":
    a = Asm()
    a("s_cmp_ge_u32 s2, 1024")
    a("s_cbranch_scc1 G_end")
    generic_path(a, 4)
    open(sys.argv[1], "w").write(wrap(a.text(), 1024, 256, 8192 + 4096, 112, 72))
```
